```python
import torch

def _softmax(x, axis=-1):
    return torch.softmax(x, dim=axis)
def _gelu(x):
    return torch.nn.functional.gelu(x, approximate="tanh")
def _silu(x):
    return torch.nn.functional.silu(x)
def _sigmoid(x):
    return torch.sigmoid(x)
def _layernorm(x, axis=-1, eps=1e-5):
    m = x.mean(dim=axis, keepdim=True)
    v = x.var(dim=axis, keepdim=True, unbiased=False)
    return (x - m) / torch.sqrt(v + eps)
def _scatter_add(tgt, idx, src, axis=0):
    return tgt.clone().index_add_(axis, idx, src)
def _segment_sum(src, seg, n):
    out = torch.zeros((n,) + src.shape[1:], dtype=src.dtype)
    return out.index_add_(0, seg, src)
def _pad(x, pw):
    flat = tuple(v for pair in reversed(pw) for v in pair)
    return torch.nn.functional.pad(x, flat)

kernel_name = 'gated_mix__sliding_local_dilated__softmax_full_mha__prompt'

def setup_inputs():

    _w = (lambda a: (lambda t: t.to(torch.bfloat16) if t.is_floating_point() else t)(torch.as_tensor(a)))
    def _A_setup():
        B, S, D = 1, 2048, 512
        return {
            "x": _w((lambda *s: torch.randn(*s, dtype=torch.bfloat16) * 0.05)(B, S, D)),
            "wqkv": _w((lambda *s: torch.randn(*s, dtype=torch.bfloat16) * 1.6)(D, 3 * D)),
            "wo": _w((lambda *s: torch.randn(*s, dtype=torch.bfloat16) * 0.05)(D, D)),
        }
    _A_in = _A_setup()

    def _B_setup():
        B, S, D = 1, 2048, 512
        return {
            "x": _w((lambda *s: torch.randn(*s, dtype=torch.bfloat16) * 0.05)(B, S, D)),
            "wqkv": _w((lambda *s: torch.randn(*s, dtype=torch.bfloat16) * 1.6)(D, 3 * D)),
            "wo": _w((lambda *s: torch.randn(*s, dtype=torch.bfloat16) * 0.1)(D, D)),
        }
    _B_in = _B_setup()

    return {
        "A_x": _A_in["x"],
        "A_wqkv": _A_in["wqkv"],
        "A_wo": _A_in["wo"],
        "B_x": _B_in["x"],
        "B_wqkv": _B_in["wqkv"],
        "B_wo": _B_in["wo"],
        "gate_w": _w((lambda *s: torch.randn(*s, dtype=torch.bfloat16) * 0.05)(512) * 16.0),
    }

def reference(A_x, A_wqkv, A_wo, B_x, B_wqkv, B_wo, gate_w):
    def _A_ref(x, wqkv, wo):
        B, S, D = x.shape
        H = 32; Dh = D // H
        W, dil = 8, 2
        qkv = (lambda x, *d: x.permute(*d))((x @ wqkv).reshape(B, S, 3, H, Dh), 2, 0, 3, 1, 4)
        q, k, v = qkv[0], qkv[1], qkv[2]
        scale = Dh ** -0.5
        pos = torch.arange(S)
        off = torch.arange(W) * dil
        idx = pos[:, None] - off[None, :]
        mask = idx >= 0
        idx_c = torch.where(mask, idx, 0).reshape(-1)
        kg = k[:, :, idx_c, :].reshape(B, H, S, W, Dh)
        vg = v[:, :, idx_c, :].reshape(B, H, S, W, Dh)
        logits = torch.einsum("bhsd,bhswd->bhsw", q, kg) * scale
        logits = torch.where(mask[None, None, :, :], logits, -1e9)
        attn = _softmax(logits, axis=-1)
        o = torch.einsum("bhsw,bhswd->bhsd", attn, vg)
        return (lambda x, *d: x.permute(*d))(o, 0, 2, 1, 3).reshape(B, S, D) @ wo

    def _B_ref(x, wqkv, wo):
        B, S, D = x.shape
        H = 32; Dh = D // H
        qkv = (lambda x, *d: x.permute(*d))((x @ wqkv).reshape(B, S, 3, H, Dh), 2, 0, 3, 1, 4)
        q, k, v = qkv[0], qkv[1], qkv[2]
        scale = Dh ** -0.5
        scores = torch.einsum("bhqd,bhkd->bhqk", q, k) * scale
        p = _softmax(scores, axis=-1)
        o = torch.einsum("bhqk,bhkd->bhqd", p, v)
        return (lambda x, *d: x.permute(*d))(o, 0, 2, 1, 3).reshape(B, S, D) @ wo

    x = A_x
    g = _sigmoid((x * gate_w).sum(-1, keepdims=True))
    a = _A_ref(x, A_wqkv, A_wo)
    b = _B_ref(x, B_wqkv, B_wo)
    return g * a + (1 - g) * b
```

```python
class Asm:
    def __init__(self):
        self.lines = []
    def __call__(self, s):
        for l in s.strip('\n').split('\n'):
            l = l.strip()
            if l:
                self.lines.append('    ' + l if not l.endswith(':') else l)
    def raw(self, s):
        self.lines.append(s)
    def c(self, s):
        self.lines.append('    ; ' + s)
    def text(self):
        return '\n'.join(self.lines) + '\n'

def vr(b, n=1):
    return f'v{b}' if n == 1 else f'v[{b}:{b+n-1}]'
def sr(b, n=1):
    return f's{b}' if n == 1 else f's[{b}:{b+n-1}]'

def mfma32(d, a, b, c=None):
    cs = vr(d, 16) if c is None else (c if isinstance(c, str) else vr(c, 16))
    return f'v_mfma_f32_32x32x16_bf16 {vr(d,16)}, {vr(a,4)}, {vr(b,4)}, {cs}'

def kernel_desc(name, vgpr, sgpr=96, accum=None):
    acc = accum if accum is not None else (vgpr + 3) // 4 * 4
    return f'''.p2align 6
.amdhsa_kernel {name}
  .amdhsa_next_free_vgpr {vgpr}
  .amdhsa_next_free_sgpr {sgpr}
  .amdhsa_accum_offset {acc}
  .amdhsa_group_segment_fixed_size 0
  .amdhsa_kernarg_size 80
  .amdhsa_user_sgpr_count 2
  .amdhsa_user_sgpr_kernarg_segment_ptr 1
  .amdhsa_system_sgpr_workgroup_id_x 1
.end_amdhsa_kernel
'''

HEADER = '''; Kernarg layout for this problem (80 bytes, ptrs only, base s[0:1]):
'''
```

```python
import sys, math, struct
from asmlib import *

NAME = 'gated_mix__sliding_local_dilated__softmax_full_mha__prompt'
MB = 1 << 20
QF = [0 * MB, 6 * MB]
KF = [2 * MB, 8 * MB]
VF = [4 * MB, 10 * MB]
OF = 12 * MB
GATE = 16 * MB
WS_BYTES = 17 * MB
CSCALE = 0.25 * math.log2(math.e)
def f32(x):
    return '0x%08x' % struct.unpack('<I', struct.pack('<f', x))[0]

def srd(a, s, ptr, nbytes):
    a(f'''s_mov_b32 s{s}, s{ptr}
    s_mov_b32 s{s+1}, s{ptr+1}
    s_mov_b32 s{s+2}, {nbytes}
    s_mov_b32 s{s+3}, 0x00020000''')

def gen_k1(a):
    K = 'qkv_kernel'
    STAGE = 40960
    NS = 4
    sX, sW, sG, sWS = 32, 36, 40, 44
    s_rb, s_cb, s_br, s_c, s_w, s_wm, s_wn = 22, 23, 24, 25, 26, 27, 28
    s_m0x, s_m0w = 29, 30
    vXg = [4, 5]; vWg = 6
    vXa = [[8, 9, 10, 11], [12, 13, 14, 15]]
    vWa = [16, 17]; vGa = [18, 19]
    vGo = 20; vGacc = 21; vQo = 22; vVo = 23
    vGx = 24
    acc = [32, 48, 64]
    xf = [80, 84]
    wf = [88, 100]
    gw = 112
    NV = 144
    a.raw(f'.globl {K}\n.p2align 8\n.type {K},@function\n{K}:')
    a(f'''s_cmp_ge_u32 s2, 256
    s_cbranch_scc1 L_k1_end
    s_load_dwordx4 s[4:7], s[0:1], 0
    s_load_dwordx2 s[8:9], s[0:1], 32
    s_load_dwordx2 s[10:11], s[0:1], 48
    s_load_dwordx2 s[12:13], s[0:1], 72
    s_and_b32 s20, s2, 7
    s_lshr_b32 s21, s2, 3
    s_and_b32 s{s_rb}, s20, 1
    s_lshl_b32 s{s_rb}, s{s_rb}, 3
    s_and_b32 s3, s21, 7
    s_add_u32 s{s_rb}, s{s_rb}, s3
    s_lshr_b32 s{s_cb}, s20, 1
    s_lshl_b32 s{s_cb}, s{s_cb}, 2
    s_lshr_b32 s3, s21, 3
    s_add_u32 s{s_cb}, s{s_cb}, s3
    s_lshr_b32 s{s_br}, s{s_cb}, 3
    s_and_b32 s{s_c}, s{s_cb}, 7
    v_and_b32 v1, 63, v0
    v_lshrrev_b32 v2, 6, v0
    s_nop 0
    v_readfirstlane_b32 s{s_w}, v2
    s_nop 3
    s_and_b32 s{s_wm}, s{s_w}, 3
    s_lshr_b32 s{s_wn}, s{s_w}, 2
    s_lshl_b32 s{s_m0x}, s{s_w}, 11
    s_mul_i32 s{s_m0w}, s{s_w}, 3072
    s_add_u32 s{s_m0w}, s{s_m0w}, 16384''')
    a.c('x DMA source offsets')
    a(f'''v_lshrrev_b32 v2, 3, v1
    v_and_b32 v3, 7, v1
    v_lshrrev_b32 v7, 1, v2
    v_xor_b32 v3, v3, v7
    s_lshl_b32 s3, s{s_rb}, 7
    s_lshl_b32 s14, s{s_w}, 4
    s_add_u32 s3, s3, s14
    v_add_u32 v2, s3, v2
    v_lshlrev_b32 v2, 10, v2
    v_lshl_add_u32 v{vXg[0]}, v3, 4, v2
    v_xor_b32 v3, 4, v3
    v_lshl_add_u32 v{vXg[1]}, v3, 4, v2
    v_add_u32 v{vXg[1]}, {8*1024 - 1024}, v{vXg[1]}''')
    a.c('W DMA source offset')
    a(f'''v_lshrrev_b32 v2, 5, v1
    v_lshlrev_b32 v2, 6, v2
    v_and_b32 v3, 3, v1
    v_lshl_add_u32 v2, v3, 4, v2
    v_bfe_u32 v3, v1, 2, 3
    s_lshl_b32 s3, s{s_w}, 3
    v_add_u32 v3, s3, v3
    s_movk_i32 s3, 3072
    v_mul_lo_u32 v3, v3, s3
    v_add_u32 v2, v2, v3
    s_lshl_b32 s3, s{s_c}, 7
    v_add_u32 v{vWg}, s3, v2''')
    a.c('x frag LDS read addresses')
    a(f'''v_lshrrev_b32 v2, 5, v1
    v_and_b32 v3, 31, v1
    v_bfe_u32 v7, v1, 1, 3
    v_xor_b32 v7, v7, v2
    s_lshl_b32 s3, s{s_wm}, 5
    v_add_u32 v3, s3, v3
    v_lshlrev_b32 v3, 7, v3
    v_lshl_add_u32 v{vXa[0][0]}, v7, 4, v3''')
    for ks in range(1, 4):
        a(f'v_xor_b32 v{vXa[0][ks]}, {ks << 5}, v{vXa[0][0]}')
    for ks in range(4):
        a(f'v_add_u32 v{vXa[1][ks]}, {2*STAGE}, v{vXa[0][ks]}')
    a.c('W frag LDS read address')
    a(f'''v_mul_u32_u24 v3, 3072, v2
    v_bfe_u32 v7, v1, 4, 1
    v_lshl_add_u32 v3, v7, 5, v3
    v_bfe_u32 v7, v1, 2, 2
    v_lshl_add_u32 v3, v7, 6, v3
    v_and_b32 v7, 3, v1
    v_lshl_add_u32 v3, v7, 3, v3
    s_lshl_b32 s3, s{s_wn}, 9
    s_add_u32 s3, s3, 16384
    v_add_u32 v{vWa[0]}, s3, v3
    v_add_u32 v{vWa[1]}, {2*STAGE}, v{vWa[0]}''')
    a.c('gate addresses')
    a(f'''s_lshl_b32 s3, s{s_cb}, 10
    v_lshlrev_b32 v3, 4, v1
    v_add_u32 v{vGa[0]}, s3, v3
    v_add_u32 v{vGa[1]}, {2*STAGE}, v{vGa[0]}
    v_and_b32 v3, 7, v1
    v_lshrrev_b32 v7, 4, v1
    v_xor_b32 v3, v3, v7
    s_and_b32 s3, s{s_cb}, 1
    s_lshl_b32 s3, s3, 2
    v_xor_b32 v3, s3, v3
    v_lshlrev_b32 v{vGo}, 4, v3
    v_mov_b32 v{vGacc}, 0''')
    a.c('store offsets')
    a(f'''v_lshlrev_b32 v{vQo}, 4, v1
    v_bfe_u32 v3, v1, 4, 1
    v_lshlrev_b32 v3, 16, v3
    v_lshl_add_u32 v3, v2, 8, v3
    v_and_b32 v7, 15, v1
    v_lshl_add_u32 v{vVo}, v7, 4, v3''')
    for r in range(48):
        a(f'v_mov_b32 v{acc[0]+r}, 0')
    a('s_waitcnt lgkmcnt(0)')
    srd(a, sX, 4, 2048 * 1024)
    a(f'''s_cmp_eq_u32 s{s_br}, 0
    s_cselect_b32 s6, s6, s8
    s_cselect_b32 s7, s7, s9''')
    srd(a, sW, 6, 512 * 3072)
    srd(a, sG, 10, 1024)
    srd(a, sWS, 12, WS_BYTES)

    def dma(c):
        st = (c % NS) * STAGE
        a(f'''s_add_u32 m0, s{s_m0x}, {st}
        s_mov_b32 s3, {c*128}
        buffer_load_dwordx4 v{vXg[0]}, s[{sX}:{sX+3}], s3 offen lds
        buffer_load_dwordx4 v{vXg[1]}, s[{sX}:{sX+3}], s3 offen offset:1024 lds
        s_add_u32 m0, s{s_m0w}, {st}
        s_mov_b32 s3, {c*196608}
        buffer_load_dwordx4 v{vWg}, s[{sW}:{sW+3}], s3 offen lds
        buffer_load_dwordx4 v{vWg}, s[{sW}:{sW+3}], s3 offen offset:1024 lds
        buffer_load_dwordx4 v{vWg}, s[{sW}:{sW+3}], s3 offen offset:2048 lds''')
    dma(0)
    for c in range(8):
        a(f'buffer_load_dwordx4 v[{gw+4*c}:{gw+4*c+3}], v{vGo}, s[{sG}:{sG+3}], 0 offen offset:{c*128}')
    for c in range(1, 4):
        dma(c)
    issued = 3
    def reads(c, ks, buf):
        hi = (c % NS) // 2
        so = ((c % NS) % 2) * STAGE
        a(f'ds_read_b128 v[{xf[buf]}:{xf[buf]+3}], v{vXa[hi][ks]} offset:{so}')
        for i in range(3):
            for t in range(2):
                r = wf[buf] + 4 * i + 2 * t
                a(f'ds_read_b64_tr_b16 v[{r}:{r+1}], v{vWa[hi]} offset:{so + ks*6144 + i*1024 + t*256}')
    def mm(buf):
        a(mfma32(acc[0], wf[buf] + 0, xf[buf]))
        a(mfma32(acc[1], wf[buf] + 4, xf[buf]))
        a(mfma32(acc[2], xf[buf], wf[buf] + 8))
    for c in range(8):
        a.c(f'chunk {c}')
        n_out = (issued - c) * 5
        a(f's_waitcnt vmcnt({n_out})')
        a('s_barrier')
        if c >= 1 and c + 3 <= 7:
            dma(c + 3); issued = c + 3
        hi = (c % NS) // 2
        so = ((c % NS) % 2) * STAGE
        a(f'ds_read_b128 v[{vGx}:{vGx+3}], v{vGa[hi]} offset:{so}')
        reads(c, 0, 0)
        reads(c, 1, 1)
        a('s_waitcnt lgkmcnt(7)')
        mm(0)
        for i in range(4):
            a(f'v_dot2_f32_bf16 v{vGacc}, v{vGx+i}, v{gw+4*c+i}, v{vGacc}')
        reads(c, 2, 0)
        a('s_waitcnt lgkmcnt(7)')
        mm(1)
        reads(c, 3, 1)
        a('s_waitcnt lgkmcnt(7)')
        mm(0)
        a('s_waitcnt lgkmcnt(0)')
        mm(1)
    a.c('epilogue')
    a(f'''s_lshl_b32 s14, s{s_c}, 2
    s_lshl_b32 s15, s{s_wn}, 1
    s_add_u32 s14, s14, s15
    s_lshl_b32 s14, s14, 6
    s_lshl_b32 s15, s{s_rb}, 2
    s_add_u32 s14, s14, s15
    s_add_u32 s14, s14, s{s_wm}
    s_lshl_b32 s14, s14, 10
    s_mul_i32 s15, s{s_br}, {6*MB}
    s_add_u32 s14, s14, s15
    s_add_u32 s15, s14, 65536
    s_add_u32 s16, s14, {2*MB}
    s_add_u32 s17, s16, 65536
    s_add_u32 s18, s14, {4*MB}
    s_mov_b32 s19, {f32(CSCALE)}
    s_nop 7''')
    for r in range(16):
        a(f'v_mul_f32 v{acc[0]+r}, s19, v{acc[0]+r}')
    for k in range(3):
        for r in range(8):
            a(f'v_cvt_pk_bf16_f32 v{acc[k]+r}, v{acc[k]+2*r}, v{acc[k]+2*r+1}')
    a(f'''buffer_store_dwordx4 v[{acc[0]}:{acc[0]+3}], v{vQo}, s[{sWS}:{sWS+3}], s14 offen
    buffer_store_dwordx4 v[{acc[0]+4}:{acc[0]+7}], v{vQo}, s[{sWS}:{sWS+3}], s15 offen
    buffer_store_dwordx4 v[{acc[1]}:{acc[1]+3}], v{vQo}, s[{sWS}:{sWS+3}], s16 offen
    buffer_store_dwordx4 v[{acc[1]+4}:{acc[1]+7}], v{vQo}, s[{sWS}:{sWS+3}], s17 offen
    buffer_store_dwordx4 v[{acc[2]}:{acc[2]+3}], v{vVo}, s[{sWS}:{sWS+3}], s18 offen
    buffer_store_dwordx4 v[{acc[2]+4}:{acc[2]+7}], v{vVo}, s[{sWS}:{sWS+3}], s18 offen offset:512''')
    a.c('gate: wave 0 only')
    a(f'''s_cmp_lg_u32 s{s_w}, 0
    s_cbranch_scc1 L_k1_end
    s_nop 1
    v_add_f32_dpp v2, v{vGacc}, v{vGacc} quad_perm:[1,0,3,2] row_mask:0xf bank_mask:0xf
    s_nop 1
    v_add_f32_dpp v3, v2, v2 quad_perm:[2,3,0,1] row_mask:0xf bank_mask:0xf
    s_nop 1
    v_add_f32_dpp v2, v3, v3 row_half_mirror row_mask:0xf bank_mask:0xf
    s_nop 1
    v_cvt_pk_bf16_f32 v2, v2, v2
    v_and_b32 v2, 0xffff0000, v2
    v_mul_f32 v2, {f32(-math.log2(math.e))}, v2
    v_exp_f32 v2, v2
    s_nop 0
    v_add_f32 v2, 1.0, v2
    v_rcp_f32 v2, v2
    s_nop 0
    v_cvt_pk_bf16_f32 v2, v2, v2
    v_and_b32 v2, 0xffff0000, v2
    v_sub_f32 v3, 1.0, v2
    v_cvt_pk_bf16_f32 v3, v3, v3
    v_and_b32 v3, 0xffff0000, v3
    v_lshrrev_b32 v7, 3, v1
    v_lshlrev_b32 v7, 3, v7
    s_lshl_b32 s14, s{s_rb}, 7
    s_lshl_b32 s15, s{s_cb}, 3
    s_add_u32 s14, s14, s15
    s_lshl_b32 s14, s14, 3
    s_add_u32 s14, s14, {GATE}
    v_and_b32 v4, 7, v1
    v_cmp_eq_u32 vcc, 0, v4
    s_and_saveexec_b64 s[16:17], vcc
    buffer_store_dwordx2 v[2:3], v7, s[{sWS}:{sWS+3}], s14 offen''')
    a('L_k1_end:')
    a('s_endpgm')
    return K, NV, NS * STAGE

def gen_k2(a):
    K = 'attn_kernel'
    sWS = 44
    s_head, s_qt, s_w, s_it, s_sync, s_fb = 22, 23, 24, 25, 26, 27
    sMask = 28
    vKa, vVa, vL16 = 4, 5, 6
    vG = 8
    vQ = 12
    vKf = [16, 20]
    vVf = [24, 32]
    vP = 40
    vC = 48
    vO = 64
    vS = [80, 96]
    vQA = 112; vKA = [116, 120]; vVA = [124, 128, 132]
    vM = 136
    NV = 144
    a.raw(f'.globl {K}\n.p2align 8\n.type {K},@function\n{K}:')
    a(f'''s_cmp_ge_u32 s2, 256
    s_cbranch_scc1 L_k2_end
    s_load_dwordx2 s[12:13], s[0:1], 72
    s_and_b32 s20, s2, 7
    s_lshr_b32 s21, s2, 3
    s_lshl_b32 s{s_head}, s20, 2
    s_lshr_b32 s3, s21, 3
    s_add_u32 s{s_head}, s{s_head}, s3
    s_and_b32 s{s_qt}, s21, 7
    s_lshl_b32 s{s_qt}, s{s_qt}, 3
    v_and_b32 v1, 63, v0
    v_lshrrev_b32 v2, 6, v0
    s_nop 0
    v_readfirstlane_b32 s{s_w}, v2
    s_nop 3
    s_add_u32 s{s_qt}, s{s_qt}, s{s_w}
    s_mov_b32 s{sMask}, 0x0000ffff
    s_mov_b32 s{sMask+1}, 0x0000ffff
    v_lshlrev_b32 v{vL16}, 4, v1
    v_mov_b32 v{vKa}, v{vL16}
    v_lshrrev_b32 v2, 5, v1
    v_and_b32 v3, 15, v1
    v_lshlrev_b32 v3, 4, v3
    v_lshl_add_u32 v7, v2, 8, v3
    v_add_u32 v{vVa}, 65536, v7
    v_and_b32 v3, 31, v1
    v_lshlrev_b32 v10, 3, v3''')
    for r in range(16):
        a(f'v_mov_b32 v{vVf[0]+r}, 0x3f803f80')
    for r in range(12):
        a(f'v_mov_b32 v{vVA[0]+r}, 0x3f803f80')
    a('s_waitcnt lgkmcnt(0)')
    srd(a, sWS, 12, WS_BYTES)
    a(f'''s_lshl_b32 s14, s{s_head}, 6
    s_add_u32 s15, s14, s{s_w}
    s_add_u32 s14, s14, s{s_qt}
    s_lshl_b32 s14, s14, 10
    s_lshl_b32 s15, s15, 10
    s_lshl_b32 s18, s{s_w}, 10''')
    a.c('A-branch loads first')
    a(f'''s_add_u32 s3, s14, {QF[0]}
    buffer_load_dwordx4 v[{vQA}:{vQA+3}], v{vL16}, s[{sWS}:{sWS+3}], s3 offen
    s_add_u32 s3, s14, {KF[0]}
    buffer_load_dwordx4 v[{vKA[1]}:{vKA[1]+3}], v{vL16}, s[{sWS}:{sWS+3}], s3 offen
    s_sub_u32 s16, s3, 1024
    s_cmp_eq_u32 s{s_qt}, 0
    s_cselect_b32 s16, s3, s16
    buffer_load_dwordx4 v[{vKA[0]}:{vKA[0]+3}], v{vL16}, s[{sWS}:{sWS+3}], s16 offen
    s_add_u32 s3, s14, {VF[0]}
    s_add_u32 s16, s16, {VF[0]-KF[0]}
    s_mov_b64 exec, s[{sMask}:{sMask+1}]
    buffer_load_dwordx4 v[{vVA[0]}:{vVA[0]+3}], v7, s[{sWS}:{sWS+3}], s16 offen offset:512
    buffer_load_dwordx4 v[{vVA[1]}:{vVA[1]+3}], v7, s[{sWS}:{sWS+3}], s3 offen
    buffer_load_dwordx4 v[{vVA[2]}:{vVA[2]+3}], v7, s[{sWS}:{sWS+3}], s3 offen offset:512
    s_mov_b64 exec, -1
    s_lshl_b32 s3, s{s_qt}, 8
    s_add_u32 s3, s3, {GATE}
    buffer_load_dwordx2 v[{vG}:{vG+1}], v10, s[{sWS}:{sWS+3}], s3 offen
    s_add_u32 s3, s14, {QF[1]}
    buffer_load_dwordx4 v[{vQ}:{vQ+3}], v{vL16}, s[{sWS}:{sWS+3}], s3 offen''')
    a.c('K/V DMA: 8 chunks x (1 K tile + 1 V tile) per wave')
    a(f'''s_add_u32 s16, s15, {KF[1]}
    s_add_u32 s17, s15, {VF[1]}''')
    for c in range(8):
        a(f'''s_add_u32 m0, s18, {c*8192}
        s_add_u32 s3, s16, {c*8192}
        buffer_load_dwordx4 v{vL16}, s[{sWS}:{sWS+3}], s3 offen lds
        s_add_u32 m0, s18, {65536 + c*8192}
        s_add_u32 s3, s17, {c*8192}
        buffer_load_dwordx4 v{vL16}, s[{sWS}:{sWS+3}], s3 offen lds''')
    a.c('A branch: mask64 = 0x5555 << (q+18), >> 4h ; inverted; prev half zero for q-tile 0')
    a(f'''v_add_u32 v10, 18, v3
    v_lshlrev_b32 v11, 2, v2
    v_sub_u32 v10, v10, v11
    v_mov_b32 v{vM}, 0x5555
    v_mov_b32 v{vM+1}, 0
    v_lshlrev_b64 v[{vM}:{vM+1}], v10, v[{vM}:{vM+1}]
    s_cmp_eq_u32 s{s_qt}, 0
    s_cselect_b32 s3, 0, -1
    v_and_b32 v{vM}, s3, v{vM}
    v_not_b32 v{vM}, v{vM}
    v_not_b32 v{vM+1}, v{vM+1}
    s_mov_b32 s3, 0xff800000''')
    for r in range(16):
        pos = 8 * (r // 4) + r % 4
        a(f'v_bfe_i32 v{vS[0]+r}, v{vM}, {pos}, 1')
        a(f'v_bfe_i32 v{vS[1]+r}, v{vM+1}, {pos}, 1')
    for r in range(32):
        a(f'v_and_b32 v{vS[0]+r}, s3, v{vS[0]+r}')
    for r in range(16):
        a(f'v_mov_b32 v{vO+r}, 0')
    a('s_waitcnt vmcnt(17)')
    a(mfma32(vS[0], vKA[0], vQA))
    a(mfma32(vS[1], vKA[1], vQA))
    a('s_nop 15')
    regs = [vS[0] + r for r in range(8, 16)] + [vS[1] + r for r in range(16)]
    a(f'v_max3_f32 v10, v{regs[0]}, v{regs[1]}, v{regs[2]}')
    for i in range(3, 23, 2):
        a(f'v_max3_f32 v10, v10, v{regs[i]}, v{regs[i+1]}')
    a(f'v_max_f32 v10, v10, v{regs[23]}')
    a('''v_mov_b32 v11, v10
    s_nop 1
    v_permlane32_swap_b32 v10, v11
    s_nop 1
    v_max_f32 v10, v10, v11''')
    for r in regs:
        a(f'v_sub_f32 v{r}, v{r}, v10')
    for r in regs:
        a(f'v_exp_f32 v{r}, v{r}')
    a('s_nop 0')
    pa = [vP, vP + 4, vC]
    for g in range(3):
        for i in range(4):
            a(f'v_cvt_pk_bf16_f32 v{pa[g]+i}, v{regs[8*g+2*i]}, v{regs[8*g+2*i+1]}')
    a('s_nop 1')
    for g in range(3):
        a(mfma32(vO, vVA[g], pa[g]))
    a('s_nop 15')
    def finish(gate_reg, ks_add, tag):
        a(f'''v_rcp_f32 v10, v{vO+8}
        s_nop 0
        v_mul_f32 v10, v10, v{gate_reg}''')
        for r in range(8):
            a(f'v_mul_f32 v{vO+r}, v{vO+r}, v10')
        for r in range(4):
            a(f'v_cvt_pk_bf16_f32 v{vO+r}, v{vO+2*r}, v{vO+2*r+1}')
        a(f'''s_lshl_b32 s3, s{s_qt}, 6
        s_add_u32 s3, s3, s{s_head}
        s_add_u32 s3, s3, {ks_add}
        s_lshl_b32 s3, s3, 10
        s_add_u32 s3, s3, {OF}
        buffer_store_dwordx4 v[{vO}:{vO+3}], v{vL16}, s[{sWS}:{sWS+3}], s3 offen''')
    finish(vG, 0, 'a')
    a.c('B branch: wait chunk 0 (store above is younger than the DMAs)')
    a('''s_waitcnt vmcnt(15)
    s_barrier''')
    a(f'''ds_read_b128 v[{vKf[0]}:{vKf[0]+3}], v{vKa}
    s_mov_b32 s{s_fb}, 0
    s_mov_b32 s{s_sync}, 0
    s_waitcnt lgkmcnt(0)''')
    a(mfma32(vS[0], vKf[0], vQ, '0'))
    a('s_nop 15')
    a(f'v_max3_f32 v10, v{vS[0]}, v{vS[0]+1}, v{vS[0]+2}')
    for i in range(3, 15, 2):
        a(f'v_max3_f32 v10, v10, v{vS[0]+i}, v{vS[0]+i+1}')
    a(f'v_max_f32 v10, v10, v{vS[0]+15}')
    a('L_k2_havemax:')
    a('''v_mov_b32 v11, v10
    s_nop 1
    v_permlane32_swap_b32 v10, v11
    s_nop 1
    v_max_f32 v10, v10, v11
    v_sub_f32 v10, 0, v10''')
    for r in range(16):
        a(f'v_mov_b32 v{vC+r}, v10')
        a(f'v_mov_b32 v{vO+r}, 0')
    for r in range(8):
        a(f'v_mov_b32 v{vP+r}, 0')
    a(f'''v_mov_b32 v{vKa}, v{vL16}
    v_add_u32 v{vVa}, 65536, v7
    ds_read_b128 v[{vKf[0]}:{vKf[0]+3}], v{vKa}
    ds_read_b128 v[{vKf[1]}:{vKf[1]+3}], v{vKa} offset:1024
    s_mov_b64 exec, s[{sMask}:{sMask+1}]
    ds_read_b128 v[{vVf[0]}:{vVf[0]+3}], v{vVa}
    ds_read_b128 v[{vVf[0]+4}:{vVf[0]+7}], v{vVa} offset:512
    ds_read_b128 v[{vVf[1]+4}:{vVf[1]+7}], v{vVa} offset:512
    s_mov_b64 exec, -1
    v_mov_b32 v{vS[1]+14}, 0
    v_mov_b32 v{vS[1]+15}, 0
    s_mov_b32 s{s_it}, 0
    s_waitcnt lgkmcnt(0)''')
    a(mfma32(vS[0], vKf[0], vQ, vC))
    a('s_nop 15')
    a.raw('.p2align 6')
    a('L_k2_loop:')
    for t in range(8):
        S = vS[t % 2]; Sp = vS[(t + 1) % 2]
        E = lambda i: a(f'v_exp_f32 v{S+i}, v{S+i}')
        C = lambda j: a(f'v_cvt_pk_bf16_f32 v{vP+j}, v{S+2*j}, v{S+2*j+1}')
        if t == 5:
            a.c('sync for next chunk')
            a(f'''s_cmp_gt_u32 s{s_sync}, 3
            s_cbranch_scc1 L_k2_nosync
            s_cmp_lt_u32 s{s_sync}, 2
            s_cbranch_scc1 L_k2_sync01
            s_cmp_eq_u32 s{s_sync}, 2
            s_cbranch_scc1 L_k2_sync2
            s_waitcnt vmcnt(0)
            s_branch L_k2_syncbar
            L_k2_sync2:
            s_waitcnt vmcnt(9)
            s_branch L_k2_syncbar
            L_k2_sync01:
            s_cmp_eq_u32 s{s_sync}, 0
            s_cbranch_scc1 L_k2_sync0
            s_waitcnt vmcnt(11)
            s_branch L_k2_syncbar
            L_k2_sync0:
            s_waitcnt vmcnt(13)
            L_k2_syncbar:
            s_barrier
            s_add_u32 s{s_sync}, s{s_sync}, 1
            L_k2_nosync:''')
        E(0)
        a(f'v_cvt_pk_bf16_f32 v{vP+7}, v{Sp+14}, v{Sp+15}')
        a('s_waitcnt lgkmcnt(0)')
        a(mfma32(Sp, vKf[(t + 1) % 2], vQ, vC))
        E(1); E(2)
        a(mfma32(vO, vVf[(t + 1) % 2] + 4, vP + 4))
        nv = vVf[(t + 1) % 2]
        a(f'''s_mov_b64 exec, s[{sMask}:{sMask+1}]
        ds_read_b128 v[{nv}:{nv+3}], v{vVa} offset:{(t+1)*1024}
        ds_read_b128 v[{nv+4}:{nv+7}], v{vVa} offset:{(t+1)*1024+512}
        s_mov_b64 exec, -1
        ds_read_b128 v[{vKf[t%2]}:{vKf[t%2]+3}], v{vKa} offset:{(t+2)*1024}''')
        C(0); E(3); E(4); C(1); E(5); E(6); C(2); E(7); E(8); C(3); E(9); E(10)
        a(mfma32(vO, vVf[t % 2], vP))
        C(4); E(11); E(12); C(5); E(13); E(14); C(6); E(15)
    a(f'''v_add_u32 v{vKa}, 8192, v{vKa}
    v_add_u32 v{vVa}, 8192, v{vVa}
    s_add_u32 s{s_it}, s{s_it}, 1
    s_cmp_lt_u32 s{s_it}, 8
    s_cbranch_scc1 L_k2_loop''')
    a(f'''v_cvt_pk_bf16_f32 v{vP+7}, v{vS[1]+14}, v{vS[1]+15}
    s_nop 1''')
    a(mfma32(vO, vVf[1] + 4, vP + 4))
    a('s_waitcnt lgkmcnt(0)')
    a('s_nop 15')
    a.c('safety check of the stand-in max: l must be < 2^64 (and not NaN)')
    a(f'''s_mov_b32 s3, 0x5f800000
    v_cmp_gt_f32 vcc, s3, v{vO+8}
    s_cmp_eq_u64 vcc, -1
    s_cbranch_scc1 L_k2_ok
    s_cmp_lg_u32 s{s_fb}, 0
    s_cbranch_scc1 L_k2_ok
    s_mov_b32 s{s_fb}, 1
    v_mov_b32 v{vKa}, v{vL16}
    v_mov_b32 v10, 0xff800000
    s_mov_b32 s{s_it}, 0
    L_k2_maxloop:
    ds_read_b128 v[{vKf[0]}:{vKf[0]+3}], v{vKa}
    v_add_u32 v{vKa}, 1024, v{vKa}
    s_waitcnt lgkmcnt(0)''')
    a(mfma32(vS[0], vKf[0], vQ, '0'))
    a('s_nop 15')
    for i in range(0, 16, 2):
        a(f'v_max3_f32 v10, v10, v{vS[0]+i}, v{vS[0]+i+1}')
    a(f'''s_add_u32 s{s_it}, s{s_it}, 1
    s_cmp_lt_u32 s{s_it}, 64
    s_cbranch_scc1 L_k2_maxloop
    s_branch L_k2_havemax
    L_k2_ok:''')
    finish(vG + 1, 32, 'b')
    a('L_k2_end:')
    a('s_endpgm')
    return K, NV, 131072

def gen_k3(a):
    K = 'oproj_kernel'
    STAGE = 32768
    NS = 4
    sWS, sWo, sOut = 44, 36, 40
    s_rb, s_cbk, s_w = 22, 23, 24
    s_kh, s_wm, s_wn = 25, 26, 27
    vL16, vWg, vOa0, vOa1, vWa0, vWa1, vSt, vRed = 4, 5, 6, 7, 8, 9, 10, 11
    acc = 16
    of = [32, 36, 40, 44]
    wf = [48, 52, 56, 60]
    tmp = 64
    NV = 80
    a.raw(f'.globl {K}\n.p2align 8\n.type {K},@function\n{K}:')
    a(f'''s_cmp_ge_u32 s2, 256
    s_cbranch_scc1 L_k3_end
    s_load_dwordx2 s[4:5], s[0:1], 16
    s_load_dwordx2 s[6:7], s[0:1], 40
    s_load_dwordx2 s[8:9], s[0:1], 56
    s_load_dwordx2 s[12:13], s[0:1], 72
    s_and_b32 s20, s2, 7
    s_lshr_b32 s21, s2, 3
    s_lshl_b32 s{s_rb}, s20, 2
    s_and_b32 s3, s21, 3
    s_add_u32 s{s_rb}, s{s_rb}, s3
    s_lshr_b32 s{s_cbk}, s21, 2
    v_and_b32 v1, 63, v0
    v_lshrrev_b32 v2, 6, v0
    s_nop 0
    v_readfirstlane_b32 s{s_w}, v2
    s_nop 3
    s_lshr_b32 s{s_kh}, s{s_w}, 2
    s_and_b32 s{s_wm}, s{s_w}, 1
    s_bfe_u32 s{s_wn}, s{s_w}, 0x10001
    v_lshlrev_b32 v{vL16}, 4, v1''')
    a.c('Wo DMA source: rows (16*kstep + 8*blk + row), cols cbk*64 + ct*32 + piece*8')
    a(f'''v_lshrrev_b32 v2, 5, v1
    v_lshlrev_b32 v3, 6, v2
    v_and_b32 v12, 3, v1
    v_lshl_add_u32 v3, v12, 4, v3
    v_bfe_u32 v12, v1, 2, 3
    v_lshl_add_u32 v3, v12, 10, v3
    s_and_b32 s3, s{s_w}, 3
    s_lshl_b32 s3, s3, 14
    s_lshl_b32 s14, s{s_cbk}, 7
    s_add_u32 s3, s3, s14
    v_add_u32 v{vWg}, s3, v3''')
    a.c('frag read addresses')
    a(f'''s_lshl_b32 s3, s{s_wm}, 13
    s_lshl_b32 s14, s{s_kh}, 12
    s_add_u32 s3, s3, s14
    v_add_u32 v{vOa0}, s3, v{vL16}
    v_add_u32 v{vOa1}, {2*STAGE}, v{vOa0}
    v_lshlrev_b32 v3, 8, v2
    v_bfe_u32 v12, v1, 4, 1
    v_lshl_add_u32 v3, v12, 5, v3
    v_bfe_u32 v12, v1, 2, 2
    v_lshl_add_u32 v3, v12, 6, v3
    v_and_b32 v12, 3, v1
    v_lshl_add_u32 v3, v12, 3, v3
    s_lshl_b32 s3, s{s_wn}, 9
    s_lshl_b32 s14, s{s_kh}, 13
    s_add_u32 s3, s3, s14
    s_add_u32 s3, s3, 16384
    v_add_u32 v{vWa0}, s3, v3
    v_add_u32 v{vWa1}, {2*STAGE}, v{vWa0}''')
    a.c('store offset: token*1024 + h*8 ; reduction address')
    a(f'''v_and_b32 v3, 31, v1
    v_lshlrev_b32 v3, 10, v3
    v_lshl_add_u32 v{vSt}, v2, 3, v3
    s_and_b32 s3, s{s_w}, 3
    s_lshl_b32 s3, s3, 12
    v_add_u32 v{vRed}, s3, v{vL16}''')
    for r in range(16):
        a(f'v_mov_b32 v{acc+r}, 0')
    a('s_waitcnt lgkmcnt(0)')
    a(f'''s_cmp_eq_u32 s{s_kh}, 0
    s_cselect_b32 s4, s4, s6
    s_cselect_b32 s5, s5, s7''')
    srd(a, sWo, 4, 512 * 1024)
    srd(a, sOut, 8, 2048 * 1024)
    srd(a, sWS, 12, WS_BYTES)
    a(f'''s_lshl_b32 s14, s{s_rb}, 7
    s_lshl_b32 s15, s{s_kh}, 5
    s_add_u32 s14, s14, s15
    s_and_b32 s15, s{s_w}, 3
    s_add_u32 s14, s14, s15
    s_lshl_b32 s14, s14, 10
    s_add_u32 s14, s14, {OF}
    s_lshl_b32 s16, s{s_w}, 10
    s_lshl_b32 s17, s{s_w}, 11
    s_add_u32 s17, s17, 16384''')
    def dma(c):
        st = (c % NS) * STAGE
        a(f'''s_add_u32 m0, s16, {st}
        s_add_u32 s3, s14, {c*4096}
        buffer_load_dwordx4 v{vL16}, s[{sWS}:{sWS+3}], s3 offen lds
        s_add_u32 m0, s16, {st + 8192}
        s_add_u32 s3, s14, {c*4096 + 65536}
        buffer_load_dwordx4 v{vL16}, s[{sWS}:{sWS+3}], s3 offen lds
        s_add_u32 m0, s17, {st}
        s_mov_b32 s3, {c*65536}
        buffer_load_dwordx4 v{vWg}, s[{sWo}:{sWo+3}], s3 offen lds
        s_add_u32 m0, s17, {st + 1024}
        s_mov_b32 s3, {c*65536 + 8192}
        buffer_load_dwordx4 v{vWg}, s[{sWo}:{sWo+3}], s3 offen lds''')
    for c in range(4):
        dma(c)
    issued = 3
    for c in range(8):
        a.c(f'chunk {c}')
        a(f's_waitcnt vmcnt({(issued - c) * 4})')
        a('s_barrier')
        if c >= 1 and c + 3 <= 7:
            dma(c + 3); issued = c + 3
        hi = (c % NS) // 2
        so = ((c % NS) % 2) * STAGE
        oa = [vOa0, vOa1][hi]; wa = [vWa0, vWa1][hi]
        for ks in range(4):
            a(f'ds_read_b128 v[{of[ks]}:{of[ks]+3}], v{oa} offset:{so + ks*1024}')
            a(f'ds_read_b64_tr_b16 v[{wf[ks]}:{wf[ks]+1}], v{wa} offset:{so + ks*2048}')
            a(f'ds_read_b64_tr_b16 v[{wf[ks]+2}:{wf[ks]+3}], v{wa} offset:{so + ks*2048 + 1024}')
        for ks in range(4):
            a(f's_waitcnt lgkmcnt({9 - 3*ks})')
            a(mfma32(acc, wf[ks], of[ks]))
    a.c('reduce the two K halves through LDS (stage 0 region is free after the last barriers)')
    a(f'''s_barrier
    s_nop 15
    s_cmp_eq_u32 s{s_kh}, 0
    s_cbranch_scc1 L_k3_lo''')
    for i in range(4):
        a(f'ds_write_b128 v{vRed}, v[{acc+4*i}:{acc+4*i+3}] offset:{i*1024}')
    a('''s_waitcnt lgkmcnt(0)
    s_barrier
    s_endpgm
    L_k3_lo:
    s_barrier''')
    for i in range(4):
        a(f'ds_read_b128 v[{tmp+4*i}:{tmp+4*i+3}], v{vRed} offset:{i*1024}')
    a(f'''s_lshl_b32 s14, s{s_rb}, 16
    s_lshl_b32 s15, s{s_wm}, 15
    s_add_u32 s14, s14, s15
    s_lshl_b32 s15, s{s_cbk}, 7
    s_add_u32 s14, s14, s15
    s_lshl_b32 s15, s{s_wn}, 6
    s_add_u32 s14, s14, s15
    s_waitcnt lgkmcnt(0)''')
    for r in range(16):
        a(f'v_add_f32 v{acc+r}, v{acc+r}, v{tmp+r}')
    for r in range(8):
        a(f'v_cvt_pk_bf16_f32 v{acc+r}, v{acc+2*r}, v{acc+2*r+1}')
    for q in range(4):
        a(f'buffer_store_dwordx2 v[{acc+2*q}:{acc+2*q+1}], v{vSt}, s[{sOut}:{sOut+3}], s14 offen offset:{q*16}')
    a('L_k3_end:')
    a('s_endpgm')
    return K, NV, NS * STAGE

def main(path):
    a = Asm()
    ks = [gen_k1(a), gen_k2(a), gen_k3(a)]
    out = HEADER
    for name, nv, lds in ks:
        out += f'; @launch kernel={name} grid=(256,1,1) block=(512,1,1) lds={lds}\n'
    out += '.amdgcn_target "amdgcn-amd-amdhsa--gfx950"\n.text\n'
    out += a.text()
    out += '.section .rodata,"a"\n'
    for name, nv, lds in ks:
        out += kernel_desc(name, nv, 64)
    open(path, 'w').write(out)

if __name__ == '__main__':
    main(sys.argv[1] if len(sys.argv) > 1 else f'cdna_kernels/{NAME}.s')
```
